```python
import torch

def _softmax(x, axis=-1):
    return torch.softmax(x, dim=axis)

def _gelu(x):
    return torch.nn.functional.gelu(x, approximate='tanh')

def _silu(x):
    return torch.nn.functional.silu(x)

def _sigmoid(x):
    return torch.sigmoid(x)

def _layernorm(x, axis=-1, eps=1e-05):
    m = x.mean(dim=axis, keepdim=True)
    v = x.var(dim=axis, keepdim=True, unbiased=False)
    return (x - m) / torch.sqrt(v + eps)

def _scatter_add(tgt, idx, src, axis=0):
    return tgt.clone().index_add_(axis, idx, src)

def _segment_sum(src, seg, n):
    out = torch.zeros((n,) + src.shape[1:], dtype=src.dtype)
    return out.index_add_(0, seg, src)

def _pad(x, pw):
    flat = tuple((v for pair in reversed(pw) for v in pair))
    return torch.nn.functional.pad(x, flat)
kernel_name = 'adaLN_cond__gqa_block_cached__glu_gated_geglu__prompt'

def setup_inputs():

    _w = lambda a: (lambda t: t.to(torch.bfloat16) if t.is_floating_point() else t)(torch.as_tensor(a))

    def _A_setup():
        B, Sq, D = (1, 2048, 512)
        Hq, Hkv, Sk, Dh = (32, 32, 2048, 128)
        assert Hq % Hkv == 0, (Hq, Hkv)
        return {'x': _w((lambda *s: torch.randn(*s, dtype=torch.bfloat16) * 0.05)(B, Sq, D)), 'k_cache': _w((lambda *s: torch.randn(*s, dtype=torch.bfloat16) * 0.8)(B, Hkv, Sk, Dh)), 'v_cache': _w((lambda *s: torch.randn(*s, dtype=torch.bfloat16) * 3.2)(B, Hkv, Sk, Dh)), 'wq': _w((lambda *s: torch.randn(*s, dtype=torch.bfloat16) * 0.8)(D, Hq * Dh) * D ** (-0.5)), 'wo': _w((lambda *s: torch.randn(*s, dtype=torch.bfloat16) * 3.2)(Hq * Dh, D) * (Hq * Dh) ** (-0.5))}
    _A_in = _A_setup()

    def _B_setup():
        B, S, Dm, Df = (1, 2048, 512, 1376)
        return {'x': _w((lambda *s: torch.randn(*s, dtype=torch.bfloat16) * 0.05)(B, S, Dm)), 'w_gate': _w((lambda *s: torch.randn(*s, dtype=torch.bfloat16) * 3.2)(Dm, Df) * Dm ** (-0.5)), 'w_up': _w((lambda *s: torch.randn(*s, dtype=torch.bfloat16) * 3.2)(Dm, Df) * Dm ** (-0.5)), 'w_down': _w((lambda *s: torch.randn(*s, dtype=torch.bfloat16) * 3.2)(Df, Dm) * Df ** (-0.5))}
    _B_in = _B_setup()
    return {'A_x': _A_in['x'], 'A_k_cache': _A_in['k_cache'], 'A_v_cache': _A_in['v_cache'], 'A_wq': _A_in['wq'], 'A_wo': _A_in['wo'], 'B_x': _B_in['x'], 'B_w_gate': _B_in['w_gate'], 'B_w_up': _B_in['w_up'], 'B_w_down': _B_in['w_down'], 'c': _w((lambda *s: torch.randn(*s, dtype=torch.bfloat16) * 0.4)(1, 512) * 8.0), 'w_mod': _w((lambda *s: torch.randn(*s, dtype=torch.bfloat16) * 0.4)(512, 6 * 512) * 512 ** (-0.5) * 8.0)}

def reference(A_x, A_k_cache, A_v_cache, A_wq, A_wo, B_x, B_w_gate, B_w_up, B_w_down, c, w_mod):

    def _A_ref(x, k_cache, v_cache, wq, wo):
        B, Sq, D = x.shape
        Hq, Dh = (32, 128)
        Hkv = k_cache.shape[1]
        rep = Hq // Hkv
        q = (lambda x, *d: x.permute(*d))((x @ wq).reshape(B, Sq, Hq, Dh), 0, 2, 1, 3)
        k = (lambda x, n, axis: torch.repeat_interleave(x, n, dim=axis))(k_cache, rep, axis=1)
        v = (lambda x, n, axis: torch.repeat_interleave(x, n, dim=axis))(v_cache, rep, axis=1)
        scores = torch.einsum('bhqd,bhkd->bhqk', q, k) * Dh ** (-0.5)
        p = _softmax(scores, axis=-1)
        o = torch.einsum('bhqk,bhkd->bhqd', p, v)
        return (lambda x, *d: x.permute(*d))(o, 0, 2, 1, 3).reshape(B, Sq, Hq * Dh) @ wo

    def _B_ref(x, w_gate, w_up, w_down):
        g = torch.einsum('bsd,df->bsf', x, w_gate)
        u = torch.einsum('bsd,df->bsf', x, w_up)
        h = _gelu(g) * u
        return torch.einsum('bsf,fd->bsd', h, w_down)
    x = A_x
    mod = (_silu(c) @ w_mod).reshape(c.shape[0], 6, 1, -1)
    sa, ca, ga, sb, cb, gb = (mod[:, 0].clone(), mod[:, 1].clone(), mod[:, 2].clone(), mod[:, 3].clone(), mod[:, 4].clone(), mod[:, 5].clone())
    h = _layernorm(x, axis=-1) * (1 + ca) + sa
    x = x + ga * _A_ref(h, A_k_cache, A_v_cache, A_wq, A_wo)
    h = _layernorm(x, axis=-1) * (1 + cb) + sb
    x = x + gb * _B_ref(h, B_w_gate, B_w_up, B_w_down)
    return x
```

```python
class Asm:
    def __init__(self):
        self.lines = []
    def e(self, s):
        self.lines.append('    ' + s)
    def label(self, s):
        self.lines.append(s + ':')
    def c(self, s):
        self.lines.append('    ; ' + s)
    def raw(self, s):
        self.lines.append(s)
    def text(self):
        return '\n'.join(self.lines) + '\n'

KA = dict(x=0, K=8, V=16, wq=24, wo=32, Bx=40, wg=48, wu=56, wd=64, c=72, wmod=80, out=88, dbg=96, ws=104)

def kernel_begin(a, name):
    a.raw(f'.globl {name}')
    a.raw('.p2align 8')
    a.raw(f'.type {name},@function')
    a.label(name)

def kernel_desc(a, name, vgpr, sgpr=102, accum=None, wgy=False):
    a.raw('.section .rodata,"a"')
    a.raw('.p2align 6')
    a.raw(f'.amdhsa_kernel {name}')
    a.raw(f'  .amdhsa_next_free_vgpr {vgpr}')
    a.raw(f'  .amdhsa_next_free_sgpr {sgpr}')
    if accum is None:
        accum = min(256, (vgpr + 3) // 4 * 4)
    a.raw(f'  .amdhsa_accum_offset {accum}')
    a.raw('  .amdhsa_group_segment_fixed_size 0')
    a.raw('  .amdhsa_kernarg_size 112')
    a.raw('  .amdhsa_user_sgpr_count 2')
    a.raw('  .amdhsa_user_sgpr_kernarg_segment_ptr 1')
    a.raw('  .amdhsa_system_sgpr_workgroup_id_x 1')
    if wgy:
        a.raw('  .amdhsa_system_sgpr_workgroup_id_y 1')
    a.raw('  .amdhsa_float_denorm_mode_32 3')
    a.raw('.end_amdhsa_kernel')
    a.raw('.text')

def load_ptr(a, sdst, key):
    a.e(f's_load_dwordx2 s[{sdst}:{sdst+1}], s[0:1], {KA[key]}')

def make_srd(a, sd, sp, nbytes, off=0):
    if off:
        a.e(f's_add_u32 s{sd}, s{sp}, {off}')
        a.e(f's_addc_u32 s{sd+1}, s{sp+1}, 0')
        a.e(f's_and_b32 s{sd+1}, s{sd+1}, 0xffff')
    else:
        a.e(f's_mov_b32 s{sd}, s{sp}')
        a.e(f's_and_b32 s{sd+1}, s{sp+1}, 0xffff')
    a.e(f's_mov_b32 s{sd+2}, {nbytes}')
    a.e(f's_mov_b32 s{sd+3}, 0x20000')
```

```python
from asmlib import *
from wsmap import *
from k_gemm import f2h

KRA = 16
VRA = 24
KDO = 28
VDO = 32
LS = 33
RM = 37
T0 = 39
SBUF = (48, 112)
PB = 176
NEGM = 208
TMP = 240
OA = 0
QA = 128
FA = 192
NFR = 16
KSTG = 16384
VBASE = 65536
THRESH = 12.0
QSCALE = 1.4426950408889634 / (128 ** 0.5)

def S(buf, kb, qb): return SBUF[buf] + (kb * 2 + qb) * 16
def P(kt, qb): return PB + (kt * 2 + qb) * 4
def O(db, qb): return OA + (db * 2 + qb) * 16
def Q(qb, ks): return QA + (qb * 8 + ks) * 4

class LdsQ:
    def __init__(self): self.q = []
    def issue(self, tag): self.q.append(tag)
    def wait_for(self, a, tag):
        idx = max(i for i, t in enumerate(self.q) if t == tag)
        n = len(self.q) - 1 - idx
        a.e(f's_waitcnt lgkmcnt({n})')
        self.q = self.q[idx + 1:]

def k_read(a, slot, ks, kb, stage):
    r = FA + slot * 4
    a.e(f'ds_read_b128 a[{r}:{r+3}], v{KRA+ks} offset:{stage*KSTG + kb*8192}')

def v_read(a, slot, db, kt, stage, half):
    r = FA + slot * 4 + half * 2
    a.e(f'ds_read_b64_tr_b16 a[{r}:{r+1}], v{VRA+db} offset:{stage*KSTG + kt*4096 + half*2048}')

def dma_k(a, stage, t):
    if t == 0:
        a.e(f's_add_u32 m0, s43, {stage*KSTG}')
        a.e('s_nop 0')
    a.e(f'buffer_load_dwordx4 v{KDO+t}, s[12:15], s50 offen offset:{t*1024} lds')

def dma_v(a, stage, t):
    if t == 0:
        a.e(f's_add_u32 m0, s43, {VBASE + stage*KSTG}')
        a.e('s_nop 0')
    a.e(f'buffer_load_dwordx4 v{VDO}, s[16:19], s51 offen offset:{t*1024} lds')

def rowmax_ops(buf):
    ops = []
    for qb in range(2):
        regs = [S(buf, kb, qb) + i for kb in range(2) for i in range(16)]
        m = RM + qb
        ops.append(f'v_max3_f32 v{m}, v{regs[0]}, v{regs[1]}, v{regs[2]}')
        i = 3
        while i + 1 < len(regs):
            ops.append(f'v_max3_f32 v{m}, v{m}, v{regs[i]}, v{regs[i+1]}')
            i += 2
        ops.append(f'v_max_f32 v{m}, v{m}, v{regs[31]}')
    tail = []
    for qb in range(2):
        tail.append(f'v_mov_b32 v{T0+qb}, v{RM+qb}')
    tail.append('s_nop 1')
    for qb in range(2):
        tail.append(f'v_permlane32_swap_b32 v{RM+qb}, v{T0+qb}')
    tail.append('s_nop 1')
    for qb in range(2):
        tail.append(f'v_max_f32 v{RM+qb}, v{RM+qb}, v{T0+qb}')
    tail.append(f'v_max_f32 v{T0+2}, v{RM}, v{RM+1}')
    return ops, tail

def rescale_block(a, buf, clamp=True, with_o=True):
    a.e('s_nop 15')
    a.e('s_nop 15')
    for qb in range(2):
        d = T0 + 3 + qb
        f = T0 + 5 + qb
        if clamp:
            a.e(f'v_max_f32 v{d}, 0, v{RM+qb}')
        else:
            a.e(f'v_mov_b32 v{d}, v{RM+qb}')
        a.e(f'v_exp_f32 v{f}, -v{d}')
    a.e('s_nop 0')
    for qb in range(2):
        d = T0 + 3 + qb; f = T0 + 5 + qb
        for kb in range(2):
            for i in range(16):
                r = S(buf, kb, qb) + i
                a.e(f'v_sub_f32 v{r}, v{r}, v{d}')
        for i in range(16):
            r = NEGM + qb * 16 + i
            a.e(f'v_sub_f32 v{r}, v{r}, v{d}')
        if with_o:
            for j in range(2):
                a.e(f'v_mul_f32 v{LS+qb*2+j}, v{LS+qb*2+j}, v{f}')
            for db in range(4):
                for i0 in range(0, 16, 4):
                    for i in range(4):
                        a.e(f'v_accvgpr_read_b32 v{TMP+i}, a{O(db,qb)+i0+i}')
                    for i in range(4):
                        a.e(f'v_mul_f32 v{TMP+i}, v{TMP+i}, v{f}')
                    for i in range(4):
                        a.e(f'v_accvgpr_write_b32 a{O(db,qb)+i0+i}, v{TMP+i}')
    a.e('s_nop 3')

DLOOK = 6
GBAR = 54

def gen_iter(a, name, u, lq):
    sm = u % 2
    qk = (u + 1) % 2
    kst = (u + 1) % 4
    vst = u % 4
    kst_next = (u + 2) % 4
    mf = []
    for ks in range(8):
        for kb in range(2):
            f = ks * 2 + kb
            for qb in range(2):
                d = S(qk, kb, qb)
                c = d if ks else NEGM + qb * 16
                fr = FA + (f % NFR) * 4
                mf.append((f, f'v_mfma_f32_32x32x16_bf16 v[{d}:{d+15}], a[{fr}:{fr+3}], a[{Q(qb,ks)}:{Q(qb,ks)+3}], v[{c}:{c+15}]'))
    for kt in range(4):
        for db in range(4):
            f = 16 + kt * 4 + db
            for qb in range(2):
                o = O(db, qb)
                fr = FA + (f % NFR) * 4
                mf.append((f, f'v_mfma_f32_32x32x16_bf16 a[{o}:{o+15}], a[{fr}:{fr+3}], v[{P(kt,qb)}:{P(kt,qb)+3}], a[{o}:{o+15}]'))
    reads = {g: [] for g in range(65)}
    NPRE = DLOOK // 2
    for f in range(NPRE, 32):
        reads[2 * f - DLOOK].append(f)
    for f in range(NPRE):
        reads[64 + 2 * f - DLOOK].append(32 + f)
    def do_read(f):
        if f < 16:
            k_read(a, f % NFR, f // 2, f % 2, kst); lq.issue(f % 32)
        elif f < 32:
            kt, db = (f - 16) // 4, (f - 16) % 4
            for half in range(2):
                v_read(a, f % NFR, db, kt, vst, half); lq.issue(f % 32)
        else:
            ff = f - 32
            k_read(a, ff % NFR, ff // 2, ff % 2, kst_next); lq.issue(ff)
    valu = []
    for kt in range(4):
        kb, t = kt // 2, kt % 2
        for qb in range(2):
            b = S(sm, kb, qb) + 8 * t
            l0, l1 = LS + qb * 2, LS + qb * 2 + 1
            def ex(i): return (f'v_exp_f32 v{b+i}, v{b+i}', 8, None)
            def ad(i): return (f'v_add_f32 v{l0 if i % 2 == 0 else l1}, v{l0 if i % 2 == 0 else l1}, v{b+i}', 4, None)
            def cv(i): return (f'v_cvt_pk_bf16_f32 v{P(kt,qb)+i//2}, v{b+i}, v{b+i+1}', 4, ('P', kt, qb) if i == 6 else None)
            seq = [ex(0), ex(1), ex(2), ad(0), ex(3), ad(1), cv(0), ex(4), ad(2), ex(5), ad(3), cv(2),
                   ex(6), ad(4), ex(7), ad(5), cv(4), ad(6), ad(7), cv(6)]
            valu += seq
    mx, tail = rowmax_ops(qk)
    nexp = len(valu)
    for t_ in mx: valu.append((t_, 4, 'max'))
    total = sum(c for _, c, _ in valu)
    NG = 60
    vi = 0
    done_cost = 0
    pdone = {}
    waited = set()
    dma = [('k', t) for t in range(4)] + [('v', t) for t in range(4)]
    dma_gaps = {GBAR + 1 + i: [d] for i, d in enumerate(dma)}
    for g in range(64):
        if g == GBAR:
            a.e('s_waitcnt vmcnt(8)')
            a.e('s_barrier')
            a.e('s_add_u32 s50, s50, 16384')
            a.e('s_add_u32 s51, s51, 16384')
        for f in reads[g]:
            do_read(f)
        for (kind, t) in dma_gaps.get(g, []):
            if kind == 'k': dma_k(a, (u + 1) % 4, t)
            else: dma_v(a, (u + 3) % 4, t)
        target = total * (g + 1) / NG
        while vi < len(valu) and done_cost + valu[vi][1] <= target + 4:
            txt, c, tag = valu[vi]
            if tag == 'max': assert g >= 36, g
            a.e(txt)
            done_cost += c
            if tag and tag != 'max': pdone[(tag[1], tag[2])] = g
            vi += 1
        if g == 61:
            assert vi == len(valu), (vi, len(valu))
            for t_ in tail: a.e(t_)
            a.e(f'v_cmp_lt_f32 vcc, s52, v{T0+2}')
        f, txt = mf[g]
        if f not in waited:
            lq.wait_for(a, f)
            waited.add(f)
        if g >= 32:
            kt, qb = (g - 32) // 8, (g - 32) % 2
            assert (kt, qb) in pdone and pdone[(kt, qb)] < g, (g, kt, qb, pdone)
        a.e(txt)
    for f in reads[64]:
        do_read(f)
    a.e('s_add_u32 s53, s53, 1')
    a.e('s_cmp_eq_u32 s53, 32')
    a.e(f's_cbranch_scc1 {name}_nr{u}')
    a.e(f's_cbranch_vccnz {name}_rs{u}')
    a.label(f'{name}_nr{u}')

def gen_attn(a, name):
    kernel_begin(a, name)
    a.e('s_cmp_ge_u32 s2, 256')
    a.e(f's_cbranch_scc1 {name}_done')
    load_ptr(a, 4, 'K'); load_ptr(a, 6, 'V'); load_ptr(a, 8, 'wq'); load_ptr(a, 10, 'ws')
    a.e('s_and_b32 s44, s2, 7')
    a.e('s_lshr_b32 s45, s2, 3')
    a.e('s_lshl_b32 s44, s44, 2')
    a.e('s_lshr_b32 s46, s45, 3')
    a.e('s_add_u32 s44, s44, s46')
    a.e('s_and_b32 s45, s45, 7')
    a.e('s_waitcnt lgkmcnt(0)')
    a.e('s_lshl_b32 s46, s44, 19')
    a.e('s_add_u32 s4, s4, s46'); a.e('s_addc_u32 s5, s5, 0')
    a.e('s_add_u32 s6, s6, s46'); a.e('s_addc_u32 s7, s7, 0')
    make_srd(a, 12, 4, 524288)
    make_srd(a, 16, 6, 524288)
    make_srd(a, 20, 8, 512 * 4096 * 2)
    make_srd(a, 24, 10, 2048 * 512 * 2, OFF_H1)
    make_srd(a, 28, 10, 2048 * 4096 * 2, OFF_O)
    a.e('v_lshrrev_b32 v1, 6, v0')
    a.e('s_nop 0')
    a.e('v_readfirstlane_b32 s40, v1')
    a.e('v_and_b32 v1, 63, v0')
    a.e('s_lshl_b32 s43, s40, 12')
    a.e('v_lshrrev_b32 v2, 4, v1')
    a.e('v_and_b32 v3, 15, v1')
    a.e('s_lshl_b32 s46, s40, 4')
    a.e('v_add_u32 v4, s46, v2')
    a.e('v_lshlrev_b32 v5, 8, v4')
    for t in range(4):
        a.e(f'v_add_u32 v6, {4*t}, v2')
        a.e('v_xor_b32 v6, v3, v6')
        a.e(f'v_lshl_add_u32 v{KDO+t}, v6, 4, v5')
    a.e('v_lshlrev_b32 v6, 2, v2')
    a.e('v_xor_b32 v6, v3, v6')
    a.e(f'v_lshl_add_u32 v{VDO}, v6, 4, v5')
    a.e('v_lshlrev_b32 v7, 13, v4')
    a.e('v_lshl_add_u32 v7, v6, 4, v7')
    a.e('v_and_b32 v8, 31, v1')
    a.e('v_lshrrev_b32 v9, 5, v1')
    a.e('v_and_b32 v10, 15, v8')
    a.e('v_lshlrev_b32 v11, 8, v8')
    for ks in range(8):
        a.e(f'v_add_u32 v12, {2*ks}, v9')
        a.e('v_xor_b32 v12, v12, v10')
        a.e(f'v_lshl_add_u32 v{KRA+ks}, v12, 4, v11')
    a.e('v_lshrrev_b32 v12, 4, v1')
    a.e('v_and_b32 v12, 1, v12')
    a.e('v_lshrrev_b32 v13, 2, v1')
    a.e('v_and_b32 v13, 3, v13')
    a.e('v_and_b32 v14, 3, v1')
    a.e('v_lshlrev_b32 v15, 2, v9')
    a.e('v_add_u32 v15, v15, v13')
    a.e('v_lshlrev_b32 v15, 8, v15')
    a.e('v_lshl_add_u32 v15, v12, 5, v15')
    a.e('v_lshl_add_u32 v15, v14, 3, v15')
    for db in range(4):
        a.e(f'v_xor_b32 v12, {db}, v13')
        a.e(f'v_lshl_add_u32 v{VRA+db}, v12, 6, v15')
        a.e(f'v_add_u32 v{VRA+db}, {VBASE}, v{VRA+db}')
    a.e('v_lshlrev_b32 v12, 10, v9')
    for db in range(4):
        a.e(f'v_add_u32 v{TMP+db}, v12, v{VRA+db}')
        a.e(f'v_subrev_u32 v{TMP+db}, {VBASE}, v{TMP+db}')
        a.e(f'v_add_u32 v{TMP+4+db}, 0x10000, v{TMP+db}')
    a.e('s_lshl_b32 s46, s45, 8')
    a.e('s_lshl_b32 s47, s40, 6')
    a.e('s_add_u32 s46, s46, s47')
    a.e('v_add_u32 v12, s46, v8')
    a.e('v_lshlrev_b32 v12, 10, v12')
    a.e('v_lshl_add_u32 v12, v9, 4, v12')
    a.e('v_add_u32 v13, 0x8000, v12')
    a.c('Wq slab DMA: 8 tiles x 4 pieces per wave')
    a.e('s_lshl_b32 s47, s44, 8')
    for tile in range(8):
        for t in range(4):
            a.e(f's_add_u32 m0, s43, {tile*16384 + t*1024}')
            a.e(f's_add_u32 s48, s47, {(tile*64 + 4*t)*8192}')
            a.e('buffer_load_dwordx4 v7, s[20:23], s48 offen lds')
    ACC = 48
    for i in range(128):
        a.e(f'v_mov_b32 v{ACC+i}, 0')
    HB = 176
    def h_loads(tile):
        buf = tile % 2
        for qb in range(2):
            for ks in range(4):
                r = HB + buf * 32 + (qb * 4 + ks) * 4
                a.e(f'buffer_load_dwordx4 v[{r}:{r+3}], v{12+qb}, s[24:27], 0 offen offset:{tile*128 + ks*32}')
    h_loads(0)
    for tile in range(8):
        if tile < 7:
            h_loads(tile + 1)
        rem = 8 if tile < 7 else 0
        a.e(f's_waitcnt vmcnt({rem})')
        if tile == 0:
            a.e('s_barrier')
        buf = tile % 2
        for ks in range(4):
            for db in range(4):
                slot = (ks * 4 + db) % NFR
                r = FA + slot * 4
                off = tile * 16384 + ks * 4096
                reg = TMP + db if off < 65536 else TMP + 4 + db
                off = off % 65536
                a.e(f'ds_read_b64_tr_b16 a[{r}:{r+1}], v{reg} offset:{off}')
                a.e(f'ds_read_b64_tr_b16 a[{r+2}:{r+3}], v{reg} offset:{off+1024}')
        for ks in range(4):
            for db in range(4):
                n = (15 - (ks * 4 + db)) * 2
                a.e(f's_waitcnt lgkmcnt({min(n, 15)})')
                slot = (ks * 4 + db) % NFR
                r = FA + slot * 4
                for qb in range(2):
                    acc = ACC + (db * 2 + qb) * 16
                    hb = HB + buf * 32 + (qb * 4 + ks) * 4
                    a.e(f'v_mfma_f32_32x32x16_bf16 v[{acc}:{acc+15}], a[{r}:{r+3}], v[{hb}:{hb+3}], v[{acc}:{acc+15}]')
    a.e('s_barrier')
    a.e('s_mov_b32 s50, 0')
    a.e('s_mov_b32 s51, 0')
    def kt_(tile):
        a.e(f's_mov_b32 s50, {tile*16384}')
        for t in range(4): dma_k(a, tile % 4, t)
    def vt_(tile):
        a.e(f's_mov_b32 s51, {tile*16384}')
        for t in range(4): dma_v(a, tile % 4, t)
    kt_(0); kt_(1); kt_(2); vt_(0); kt_(3); vt_(1)
    a.e('s_nop 7')
    a.e(f's_mov_b32 s46, {f2h(QSCALE)}')
    for qb in range(2):
        for db in range(4):
            acc = ACC + (db * 2 + qb) * 16
            for t in range(2):
                ks = db * 2 + t
                for i in range(8):
                    a.e(f'v_mul_f32 v{acc+8*t+i}, s46, v{acc+8*t+i}')
                for i in range(4):
                    a.e(f'v_cvt_pk_bf16_f32 v{TMP+8+i}, v{acc+8*t+2*i}, v{acc+8*t+2*i+1}')
                a.e('s_nop 1')
                a.e(f'v_permlane32_swap_b32 v{TMP+8}, v{TMP+10}')
                a.e(f'v_permlane32_swap_b32 v{TMP+9}, v{TMP+11}')
                a.e('s_nop 1')
                for i in range(4):
                    a.e(f'v_accvgpr_write_b32 a{Q(qb,ks)+i}, v{TMP+8+i}')
    for i in range(128):
        a.e(f'v_accvgpr_write_b32 a{OA+i}, 0')
    for i in range(4):
        a.e(f'v_mov_b32 v{LS+i}, 0')
    for i in range(32):
        a.e(f'v_mov_b32 v{NEGM+i}, 0')
    a.e(f's_mov_b32 s52, {f2h(THRESH)}')
    a.e('s_mov_b32 s53, 0')
    a.e('s_waitcnt vmcnt(20)')
    a.e('s_barrier')
    for f in range(16):
        k_read(a, f, f // 2, f % 2, 0)
    for ks in range(8):
        for kb in range(2):
            f = ks * 2 + kb
            a.e(f's_waitcnt lgkmcnt({15 - f})')
            for qb in range(2):
                d = S(0, kb, qb)
                c = d if ks else NEGM + qb * 16
                fr = FA + f * 4
                a.e(f'v_mfma_f32_32x32x16_bf16 v[{d}:{d+15}], a[{fr}:{fr+3}], a[{Q(qb,ks)}:{Q(qb,ks)+3}], v[{c}:{c+15}]')
    a.e('s_waitcnt vmcnt(8)')
    a.e('s_barrier')
    kt_(4); vt_(2)
    a.e('s_nop 7')
    mx, tail = rowmax_ops(0)
    for t_ in mx: a.e(t_)
    for t_ in tail: a.e(t_)
    rescale_block(a, 0, clamp=False, with_o=False)
    lq = LdsQ()
    for f in range(DLOOK // 2):
        k_read(a, f, f // 2, f % 2, 1); lq.issue(f)
    init_q = list(lq.q)
    a.label(f'{name}_loop')
    for u in range(4):
        gen_iter(a, name, u, lq)
    assert lq.q == init_q, (lq.q, init_q)
    a.e('s_cmp_lt_u32 s53, 32')
    a.e(f's_cbranch_scc1 {name}_loop')
    a.e('s_waitcnt vmcnt(0) lgkmcnt(0)')
    a.e('s_nop 15')
    a.e('s_nop 15')
    for qb in range(2):
        l = LS + qb * 2
        a.e(f'v_add_f32 v{l}, v{l}, v{l+1}')
        a.e(f'v_mov_b32 v{l+1}, v{l}')
    a.e('s_nop 1')
    for qb in range(2):
        l = LS + qb * 2
        a.e(f'v_permlane32_swap_b32 v{l}, v{l+1}')
    a.e('s_nop 1')
    for qb in range(2):
        l = LS + qb * 2
        a.e(f'v_add_f32 v{l}, v{l}, v{l+1}')
        a.e(f'v_rcp_f32 v{l}, v{l}')
    a.e('s_lshl_b32 s46, s45, 8')
    a.e('s_lshl_b32 s47, s40, 6')
    a.e('s_add_u32 s46, s46, s47')
    a.e('v_add_u32 v12, s46, v8')
    a.e('v_lshlrev_b32 v12, 13, v12')
    a.e('s_lshl_b32 s47, s44, 8')
    a.e('v_add_u32 v12, s47, v12')
    a.e('v_lshl_add_u32 v12, v9, 4, v12')
    a.e('s_mov_b32 s46, 0x40000')
    W = 48
    for qb in range(2):
        l = LS + qb * 2
        for db in range(4):
            for pr in range(2):
                w = W + ((db * 2 + pr) % 4) * 4
                for i in range(8):
                    a.e(f'v_accvgpr_read_b32 v{TMP+i}, a{O(db,qb)+8*pr+i}')
                for i in range(8):
                    a.e(f'v_mul_f32 v{TMP+i}, v{TMP+i}, v{l}')
                for i in range(4):
                    a.e(f'v_cvt_pk_bf16_f32 v{w+i}, v{TMP+2*i}, v{TMP+2*i+1}')
                a.e('s_nop 1')
                a.e(f'v_permlane32_swap_b32 v{w}, v{w+2}')
                a.e(f'v_permlane32_swap_b32 v{w+1}, v{w+3}')
                a.e('s_nop 1')
                so = 's46' if qb else '0'
                a.e(f'buffer_store_dwordx4 v[{w}:{w+3}], v12, s[28:31], {so} offen offset:{db*64 + pr*32}')
    a.e('s_endpgm')
    for u in range(4):
        a.label(f'{name}_rs{u}')
        rescale_block(a, (u + 1) % 2)
        a.e(f's_branch {name}_nr{u}')
    a.label(f'{name}_done')
    a.e('s_endpgm')
    kernel_desc(a, name, 512, accum=256)
    return 131072
```

```python
from asmlib import *
from wsmap import *
from k_small import rnd_pair, LOG2E

XROW = 128
WSUB = 8192

def gen_gemm(a, name, *, BM, nsub, MB, wfrags_of_wave, nsteps, NS, setup, epilogue, nwg, vgpr=128):
    kernel_begin(a, name)
    a.e(f's_cmp_ge_u32 s2, {nwg}')
    a.e(f's_cbranch_scc1 {name}_done')
    setup(a)
    XT = BM * XROW
    STAGE = XT + nsub * WSUB
    a.e('v_lshrrev_b32 v1, 6, v0')
    a.e('s_nop 0')
    a.e('v_readfirstlane_b32 s40, v1')
    a.e('v_and_b32 v2, 63, v0')
    a.e('v_lshrrev_b32 v3, 3, v2')
    a.e('v_and_b32 v4, 7, v2')
    a.e('v_lshrrev_b32 v5, 4, v2')
    a.e('s_and_b32 s41, s40, 1')
    a.e('s_lshl_b32 s41, s41, 2')
    a.e('v_add_u32 v6, s41, v5')
    a.e('v_and_b32 v6, 7, v6')
    a.e('v_xor_b32 v6, v4, v6')
    a.e('v_lshlrev_b32 v6, 4, v6')
    a.e('s_lshl_b32 s42, s40, 3')
    a.e('v_add_u32 v7, s42, v3')
    a.e('v_mul_lo_u32 v8, v7, s31')
    a.e('v_add_u32 v8, v8, v6')
    a.e('v_add_u32 v8, s30, v8')
    a.e('v_and_b32 v6, 1, v5')
    a.e('v_lshlrev_b32 v6, 2, v6')
    a.e('v_xor_b32 v6, v4, v6')
    a.e('v_lshlrev_b32 v6, 4, v6')
    a.e('v_mul_lo_u32 v9, v7, s33')
    a.e('v_add_u32 v9, v9, v6')
    for st in range(nsub):
        a.e(f'v_add_u32 v{10+st}, s{34+st}, v9')
    a.e('s_lshl_b32 s43, s40, 10')
    wm_of, wn_of = wfrags_of_wave['wm'], wfrags_of_wave['wn']
    a.e(f'v_and_b32 v3, 31, v2')
    a.e(f'v_lshrrev_b32 v4, 5, v2')
    wm_of(a, 44)
    wn_of(a, 45)
    a.e(f's_mul_i32 s46, s44, {MB*32}')
    a.e('v_add_u32 v5, s46, v3')
    a.e('v_lshrrev_b32 v6, 1, v5')
    a.e('v_and_b32 v6, 7, v6')
    a.e('v_lshlrev_b32 v7, 7, v5')
    XA = 16
    for ks in range(4):
        a.e(f'v_add_u32 v{XA+ks}, {2*ks}, v4')
        a.e(f'v_xor_b32 v{XA+ks}, v{XA+ks}, v6')
        a.e(f'v_lshl_add_u32 v{XA+ks}, v{XA+ks}, 4, v7')
        a.e(f'v_add_u32 v{XA+4+ks}, 0x10000, v{XA+ks}')
    WA = 24
    a.e('v_lshrrev_b32 v5, 4, v2')
    a.e('v_and_b32 v5, 1, v5')
    a.e('v_lshrrev_b32 v6, 2, v2')
    a.e('v_and_b32 v6, 3, v6')
    a.e('v_and_b32 v7, 3, v2')
    a.e('v_lshlrev_b32 v12, 3, v4')
    a.e('v_add_u32 v12, v12, v6')
    a.e('v_lshlrev_b32 v12, 7, v12')
    a.e('v_lshl_add_u32 v12, v5, 5, v12')
    a.e('v_lshl_add_u32 v12, v7, 3, v12')
    a.e('v_lshrrev_b32 v13, 1, v6')
    a.e('v_and_b32 v13, 1, v13')
    for nb in range(2):
        a.e(f'v_xor_b32 v14, {nb}, v13')
        a.e(f'v_lshl_add_u32 v{WA+nb}, v14, 6, v12')
        a.e(f'v_add_u32 v{WA+2+nb}, 0x10000, v{WA+nb}')
    wf = wfrags_of_wave['frags']
    NF = len(wf)
    ACC = 32
    nacc = MB * NF
    for i in range(nacc * 16):
        a.e(f'v_mov_b32 v{ACC+i}, 0')
    FR = ACC + nacc * 16
    if any(f[1] == 'wn' for f in wf):
        a.e('s_cmp_eq_u32 s45, 0')
        a.e(f's_cselect_b64 s[48:49], -1, 0')
        a.e(f'v_cndmask_b32 v28, v{WA+1}, v{WA}, s[48:49]')
        a.e(f'v_cndmask_b32 v29, v{WA+3}, v{WA+2}, s[48:49]')
    if any(f[0] == 'wn' for f in wf):
        a.e(f's_mul_i32 s47, s45, {WSUB}')
        for nb in range(2):
            a.e(f'v_add_u32 v{WA+nb}, s47, v{WA+nb}')
            a.e(f'v_add_u32 v{WA+2+nb}, s47, v{WA+2+nb}')

    outstanding = []
    def issue_stage(kt):
        sb = (kt % NS) * STAGE
        for t in range(BM // 32):
            a.e(f's_add_u32 m0, s43, {sb + t*4096}')
            a.e(f's_mul_i32 s50, s31, {32*t}')
            a.e(f's_add_u32 s50, s50, {kt*128}')
            a.e(f'buffer_load_dwordx4 v8, s[12:15], s50 offen lds')
            outstanding.append(kt)
        for st in range(nsub):
            srd = a.wsrd[st]
            for t in range(2):
                a.e(f's_add_u32 m0, s43, {sb + XT + st*WSUB + t*4096}')
                a.e(f's_mul_i32 s50, s33, {kt*64 + 32*t}')
                a.e(f'buffer_load_dwordx4 v{10+st}, s[{srd}:{srd+3}], s50 offen lds')
                outstanding.append(kt)
    def lds_addr(regs_lo, regs_hi, off):
        return (regs_lo, off) if off < 65536 else (regs_hi, off - 65536)

    for kt in range(min(NS - 1, nsteps)):
        issue_stage(kt)
    for kt in range(nsteps):
        n_after = sum(1 for s in outstanding if s > kt)
        a.e(f's_waitcnt vmcnt({n_after})')
        outstanding[:] = [s for s in outstanding if s > kt]
        a.e('s_barrier')
        if kt + NS - 1 < nsteps:
            issue_stage(kt + NS - 1)
        sb = (kt % NS) * STAGE
        def reads(ks, buf):
            base = FR + buf * (MB + NF) * 4
            for mb in range(MB):
                r, off = lds_addr(XA + ks, XA + 4 + ks, sb + mb * 4096)
                a.e(f'ds_read_b128 v[{base+mb*4}:{base+mb*4+3}], v{r} offset:{off}')
            for fi, (st, nb) in enumerate(wf):
                stoff = 0 if st == 'wn' else st * WSUB
                lo, hi = (28, 29) if nb == 'wn' else (WA + nb, WA + 2 + nb)
                d = base + (MB + fi) * 4
                for half in range(2):
                    r, off = lds_addr(lo, hi, sb + XT + stoff + ks * 2048 + half * 512)
                    a.e(f'ds_read_b64_tr_b16 v[{d+half*2}:{d+half*2+1}], v{r} offset:{off}')
        nrd = MB + 2 * NF
        reads(0, 0)
        for ks in range(4):
            if ks < 3:
                reads(ks + 1, (ks + 1) % 2)
                a.e(f's_waitcnt lgkmcnt({nrd})')
            else:
                a.e('s_waitcnt lgkmcnt(0)')
            base = FR + (ks % 2) * (MB + NF) * 4
            for mb in range(MB):
                for fi in range(NF):
                    acc = ACC + (mb * NF + fi) * 16
                    wv = base + (MB + fi) * 4
                    xv = base + mb * 4
                    a.e(f'v_mfma_f32_32x32x16_bf16 v[{acc}:{acc+15}], v[{wv}:{wv+3}], v[{xv}:{xv+3}], v[{acc}:{acc+15}]')
    a.e('s_nop 15')
    a.e('s_nop 3')
    epilogue(a, ACC, FR)
    a.label(f'{name}_done')
    a.e('s_endpgm')
    kernel_desc(a, name, vgpr)
    return NS * STAGE

def wm2(a, s): a.e(f's_lshr_b32 s{s}, s40, 1')
def wn2(a, s): a.e(f's_and_b32 s{s}, s40, 1')

def gen_oproj(a, name):
    def setup(a):
        load_ptr(a, 4, 'ws'); load_ptr(a, 6, 'wo')
        a.e('s_waitcnt lgkmcnt(0)')
        make_srd(a, 12, 4, 2048 * 4096 * 2, OFF_O)
        make_srd(a, 16, 6, 4096 * 512 * 2)
        make_srd(a, 24, 4, 4 * 2048 * 512 * 4, OFF_PART)
        a.wsrd = [16, 16]
        a.e('s_and_b32 s51, s2, 3')
        a.e('s_lshr_b32 s52, s2, 2')
        a.e('s_and_b32 s52, s52, 3')
        a.e('s_lshr_b32 s53, s2, 4')
        a.e('s_mov_b32 s31, 8192')
        a.e('s_mov_b32 s33, 1024')
        a.e('s_lshl_b32 s30, s53, 20')
        a.e('s_lshl_b32 s54, s51, 11')
        a.e('s_add_u32 s30, s30, s54')
        a.e('s_lshl_b32 s34, s51, 20')
        a.e('s_lshl_b32 s54, s52, 8')
        a.e('s_add_u32 s34, s34, s54')
        a.e('s_add_u32 s35, s34, 128')
    def epi(a, ACC, FR):
        a.e('s_lshl_b32 s54, s53, 7')
        a.e('s_add_u32 s54, s54, s46')
        a.e('v_add_u32 v5, s54, v3')
        a.e('v_lshlrev_b32 v5, 11, v5')
        a.e('s_lshl_b32 s54, s51, 22')
        a.e('v_add_u32 v5, s54, v5')
        a.e('s_lshl_b32 s54, s52, 9')
        a.e('s_lshl_b32 s55, s45, 8')
        a.e('s_add_u32 s54, s54, s55')
        a.e('v_add_u32 v5, s54, v5')
        a.e('v_lshl_add_u32 v5, v4, 4, v5')
        for mb in range(2):
            for fi in range(2):
                acc = ACC + (mb * 2 + fi) * 16
                for q in range(4):
                    off = mb * 32 * 2048 + fi * 128 + q * 32
                    if off < 4096:
                        a.e(f'buffer_store_dwordx4 v[{acc+4*q}:{acc+4*q+3}], v5, s[24:27], 0 offen offset:{off}')
                    else:
                        a.e(f's_mov_b32 s54, {mb*32*2048}')
                        a.e(f'buffer_store_dwordx4 v[{acc+4*q}:{acc+4*q+3}], v5, s[24:27], s54 offen offset:{off - mb*32*2048}')
    return gen_gemm(a, name, BM=128, nsub=2, MB=2,
                    wfrags_of_wave=dict(wm=wm2, wn=wn2, frags=[('wn', 0), ('wn', 1)]),
                    nsteps=16, NS=3, setup=setup, epilogue=epi, nwg=256)

def gelu_mul(a, g, u, t0, t1, t2):
    a.e(f'v_mul_f32 v{t0}, v{g}, v{g}')
    a.e(f'v_mul_f32 v{t0}, v{t0}, v{g}')
    a.e(f'v_fma_f32 v{t0}, v{t0}, s60, v{g}')
    a.e(f'v_mul_f32 v{t0}, s61, v{t0}')
    a.e(f'v_exp_f32 v{t0}, v{t0}')
    a.e('s_nop 0')
    a.e(f'v_add_f32 v{t0}, 1.0, v{t0}')
    a.e(f'v_rcp_f32 v{t0}, v{t0}')
    a.e('s_nop 0')
    a.e(f'v_fma_f32 v{g}, -v{g}, v{t0}, v{g}')

import struct
def f2h(f):
    return '0x%08x' % struct.unpack('<I', struct.pack('<f', f))[0]

def gen_gateup(a, name):
    def setup(a):
        load_ptr(a, 4, 'ws'); load_ptr(a, 6, 'wg'); load_ptr(a, 8, 'wu')
        a.e('s_waitcnt lgkmcnt(0)')
        make_srd(a, 12, 4, 2048 * 512 * 2, OFF_H2)
        make_srd(a, 16, 6, 512 * 1376 * 2)
        make_srd(a, 20, 8, 512 * 1376 * 2)
        make_srd(a, 24, 4, 2048 * 1376 * 2, OFF_HM)
        a.wsrd = [16, 20]
        a.e('s_mul_hi_u32 s53, s2, 0x0ba2e8bb')
        a.e('s_mul_i32 s54, s53, 22')
        a.e('s_sub_u32 s52, s2, s54')
        a.e('s_mov_b32 s31, 1024')
        a.e('s_mov_b32 s33, 2752')
        a.e('s_lshl_b32 s30, s53, 17')
        a.e('s_lshl_b32 s34, s52, 7')
        a.e('s_mov_b32 s35, s34')
        a.e(f's_mov_b32 s60, {f2h(0.044715)}')
        a.e(f's_mov_b32 s61, {f2h(2*0.7978845608028654*1.4426950408889634)}')
    def epi(a, ACC, FR):
        a.e('s_lshl_b32 s54, s53, 7')
        a.e('s_add_u32 s54, s54, s46')
        a.e('v_add_u32 v5, s54, v3')
        a.e('s_mov_b32 s55, 2752')
        a.e('v_mul_lo_u32 v5, v5, s55')
        a.e('s_lshl_b32 s54, s52, 6')
        a.e('s_lshl_b32 s55, s45, 5')
        a.e('s_add_u32 s54, s54, s55')
        a.e('v_lshlrev_b32 v6, 2, v4')
        a.e('v_add_u32 v6, s54, v6')
        a.e('v_lshl_add_u32 v5, v6, 1, v5')
        a.e('s_cmp_ge_u32 s54, 1376')
        a.e(f's_cbranch_scc1 {name}_done')
        T = FR
        for mb in range(2):
            g0 = ACC + (mb * 2 + 0) * 16
            u0 = ACC + (mb * 2 + 1) * 16
            for i in range(0, 16, 2):
                rnd_pair(a, g0 + i, g0 + i + 1, T)
                rnd_pair(a, u0 + i, u0 + i + 1, T)
                for j in (i, i + 1):
                    gelu_mul(a, g0 + j, u0 + j, T + 1, T + 2, T + 3)
                rnd_pair(a, g0 + i, g0 + i + 1, T)
                a.e(f'v_mul_f32 v{g0+i}, v{g0+i}, v{u0+i}')
                a.e(f'v_mul_f32 v{g0+i+1}, v{g0+i+1}, v{u0+i+1}')
                a.e(f'v_cvt_pk_bf16_f32 v{u0+i//2}, v{g0+i}, v{g0+i+1}')
            for q in range(4):
                a.e(f's_mov_b32 s54, {mb*32*2752}')
                a.e(f'buffer_store_dwordx2 v[{u0+2*q}:{u0+2*q+1}], v5, s[24:27], s54 offen offset:{q*16}')
    return gen_gemm(a, name, BM=128, nsub=2, MB=2,
                    wfrags_of_wave=dict(wm=wm2, wn=wn2, frags=[(0, 'wn'), (1, 'wn')]),
                    nsteps=8, NS=2, setup=setup, epilogue=epi, nwg=352)

def gen_down(a, name):
    def setup(a):
        load_ptr(a, 4, 'ws'); load_ptr(a, 6, 'wd'); load_ptr(a, 8, 'out')
        a.e('s_waitcnt lgkmcnt(0)')
        make_srd(a, 12, 4, 2048 * 1376 * 2, OFF_HM)
        make_srd(a, 16, 6, 1376 * 512 * 2)
        make_srd(a, 24, 8, 2048 * 512 * 2)
        make_srd(a, 56, 4, 2048 * 512 * 2, OFF_X1)
        make_srd(a, 60, 4, 3072 * 4, OFF_MOD)
        a.wsrd = [16]
        a.e('s_and_b32 s52, s2, 7')
        a.e('s_lshr_b32 s53, s2, 3')
        a.e('s_mov_b32 s31, 2752')
        a.e('s_mov_b32 s33, 1024')
        a.e('s_mul_i32 s30, s53, 64*2752')
        a.e('s_lshl_b32 s34, s52, 7')
    def epi(a, ACC, FR):
        a.e('s_lshl_b32 s54, s53, 6')
        a.e('s_add_u32 s54, s54, s46')
        a.e('v_add_u32 v5, s54, v3')
        a.e('s_lshl_b32 s54, s52, 6')
        a.e('s_lshl_b32 s55, s45, 5')
        a.e('s_add_u32 s54, s54, s55')
        a.e('v_lshlrev_b32 v6, 2, v4')
        a.e('v_add_u32 v6, s54, v6')
        a.e('v_lshlrev_b32 v7, 2, v6')
        a.e('v_lshlrev_b32 v5, 10, v5')
        a.e('v_lshl_add_u32 v5, v6, 1, v5')
        T = FR
        a.e(f's_mov_b32 s54, {5*2048}')
        for q in range(4):
            a.e(f'buffer_load_dwordx4 v[{T+4*q}:{T+4*q+3}], v7, s[60:63], s54 offen offset:{q*32}')
            a.e(f'buffer_load_dwordx2 v[{T+16+2*q}:{T+17+2*q}], v5, s[56:59], 0 offen offset:{q*16}')
        a.e('s_waitcnt vmcnt(0)')
        for q in range(4):
            for i in (0, 2):
                c0 = ACC + 4 * q + i
                rnd_pair(a, c0, c0 + 1, T + 24)
                a.e(f'v_mul_f32 v{c0}, v{c0}, v{T+4*q+i}')
                a.e(f'v_mul_f32 v{c0+1}, v{c0+1}, v{T+4*q+i+1}')
                rnd_pair(a, c0, c0 + 1, T + 24)
                xr = T + 16 + 2 * q + i // 2
                a.e(f'v_lshlrev_b32 v{T+25}, 16, v{xr}')
                a.e(f'v_and_b32 v{T+26}, 0xffff0000, v{xr}')
                a.e(f'v_add_f32 v{c0}, v{c0}, v{T+25}')
                a.e(f'v_add_f32 v{c0+1}, v{c0+1}, v{T+26}')
                a.e(f'v_cvt_pk_bf16_f32 v{xr}, v{c0}, v{c0+1}')
            a.e(f'buffer_store_dwordx2 v[{T+16+2*q}:{T+17+2*q}], v5, s[24:27], 0 offen offset:{q*16}')
    return gen_gemm(a, name, BM=64, nsub=1, MB=1,
                    wfrags_of_wave=dict(wm=wm2, wn=wn2, frags=[(0, 'wn')]),
                    nsteps=22, NS=3, setup=setup, epilogue=epi, nwg=256)
```

```python
from asmlib import *
from wsmap import *

LOG2E = 0x3fb8aa3b

def rnd_pair(a, x, y, t):
    a.e(f'v_cvt_pk_bf16_f32 v{t}, v{x}, v{y}')
    a.e(f'v_lshlrev_b32 v{x}, 16, v{t}')
    a.e(f'v_and_b32 v{y}, 0xffff0000, v{t}')

def wave_sum(a, v, t, s0):
    for ctl in ('quad_perm:[1,0,3,2]', 'quad_perm:[2,3,0,1]', 'row_half_mirror', 'row_mirror'):
        a.e('s_nop 1')
        a.e(f'v_add_f32_dpp v{t}, v{v}, v{v} {ctl} row_mask:0xf bank_mask:0xf')
        a.e(f'v_mov_b32 v{v}, v{t}')
    a.e('s_nop 1')
    for i in range(4):
        a.e(f'v_readlane_b32 s{s0+i}, v{v}, {16*i}')
    a.e('s_nop 1')
    a.e(f'v_mov_b32 v{v}, s{s0}')
    a.e(f'v_add_f32 v{v}, s{s0+1}, v{v}')
    a.e(f'v_add_f32 v{v}, s{s0+2}, v{v}')
    a.e(f'v_add_f32 v{v}, s{s0+3}, v{v}')

def gen_mod(a, name):
    kernel_begin(a, name)
    a.e('s_cmp_ge_u32 s2, 48')
    a.e(f's_cbranch_scc1 {name}_done')
    load_ptr(a, 4, 'c'); load_ptr(a, 6, 'wmod'); load_ptr(a, 8, 'ws')
    a.e('s_waitcnt lgkmcnt(0)')
    make_srd(a, 12, 4, 1024)
    make_srd(a, 16, 6, 512 * 3072 * 2)
    make_srd(a, 20, 8, 3072 * 4, OFF_MOD)
    a.e('v_lshlrev_b32 v1, 2, v0')
    a.e('buffer_load_dword v2, v1, s[12:15], 0 offen')
    a.e('s_waitcnt vmcnt(0)')
    a.e('v_lshlrev_b32 v4, 16, v2')
    a.e('v_and_b32 v5, 0xffff0000, v2')
    a.e(f's_mov_b32 s24, {LOG2E}')
    for r, t in ((4, 3), (5, 6)):
        a.e(f'v_mul_f32 v{t}, s24, v{r}')
        a.e(f'v_exp_f32 v{t}, -v{t}')
        a.e('s_nop 0')
        a.e(f'v_add_f32 v{t}, 1.0, v{t}')
        a.e(f'v_rcp_f32 v{t}, v{t}')
        a.e('s_nop 0')
        a.e(f'v_mul_f32 v{r}, v{r}, v{t}')
    rnd_pair(a, 4, 5, 7)
    a.e('v_lshlrev_b32 v1, 3, v0')
    a.e('ds_write_b64 v1, v[4:5]')
    a.e('v_and_b32 v8, 31, v0')
    a.e('v_lshrrev_b32 v9, 5, v0')
    a.e('s_lshl_b32 s25, s2, 7')
    a.e('v_lshlrev_b32 v10, 2, v8')
    a.e('v_add_u32 v10, s25, v10')
    a.e('s_mov_b32 s26, 6144*64')
    a.e('v_mul_lo_u32 v11, v9, s26')
    a.e('v_add_u32 v10, v10, v11')
    a.e('v_lshlrev_b32 v12, 8, v9')
    a.e('v_mov_b32 v14, 0')
    a.e('v_mov_b32 v15, 0')
    a.e('s_waitcnt lgkmcnt(0)')
    a.e('s_barrier')
    for b in range(4):
        for i in range(16):
            k = b * 16 + i
            a.e(f's_mov_b32 s27, {k*6144}')
            a.e(f'buffer_load_dword v{20+i}, v10, s[16:19], s27 offen')
        for i in range(4):
            a.e(f'ds_read_b128 v[{40+4*i}:{43+4*i}], v12 offset:{(b*16+i*4)*4}')
        a.e('s_waitcnt vmcnt(0) lgkmcnt(0)')
        for i in range(16):
            a.e(f'v_lshlrev_b32 v13, 16, v{20+i}')
            a.e(f'v_and_b32 v16, 0xffff0000, v{20+i}')
            a.e(f'v_fmac_f32 v14, v13, v{40+i}')
            a.e(f'v_fmac_f32 v15, v16, v{40+i}')
    a.e('v_lshlrev_b32 v17, 8, v9')
    a.e('v_lshl_add_u32 v17, v8, 3, v17')
    a.e('ds_write_b64 v17, v[14:15] offset:2048')
    a.e('s_waitcnt lgkmcnt(0)')
    a.e('s_barrier')
    a.e('v_cmp_gt_u32 vcc, 64, v0')
    a.e('s_and_saveexec_b64 s[28:29], vcc')
    a.e(f's_cbranch_execz {name}_done')
    a.e('v_lshlrev_b32 v1, 2, v0')
    for i in range(8):
        a.e(f'ds_read_b32 v{20+i}, v1 offset:{2048 + i*256}')
    a.e('s_waitcnt lgkmcnt(0)')
    for i in range(1, 8):
        a.e(f'v_add_f32 v20, v20, v{20+i}')
    rnd_pair(a, 20, 21, 7)
    a.e('s_lshl_b32 s25, s2, 8')
    a.e('v_add_u32 v1, s25, v1')
    a.e('buffer_store_dword v20, v1, s[20:23], 0 offen')
    a.label(f'{name}_done')
    a.e('s_endpgm')
    kernel_desc(a, name, 64)

def ln_modulate(a, X, T, mod_srd, shift_idx, scale_idx, sbase):
    S = T
    a.c('load modulation vectors')
    a.e(f'v_mbcnt_lo_u32_b32 v{T+1}, -1, 0')
    a.e(f'v_mbcnt_hi_u32_b32 v{T+1}, -1, v{T+1}')
    a.e(f'v_lshlrev_b32 v{T+1}, 5, v{T+1}')
    SH = T + 4; SC = T + 12
    a.e(f'buffer_load_dwordx4 v[{SH}:{SH+3}], v{T+1}, s[{mod_srd}:{mod_srd+3}], 0 offen offset:{shift_idx*2048 % 4096}' if shift_idx*2048 < 4096 else f's_mov_b32 s{sbase+5}, {shift_idx*2048}')
    if shift_idx*2048 >= 4096:
        a.e(f'buffer_load_dwordx4 v[{SH}:{SH+3}], v{T+1}, s[{mod_srd}:{mod_srd+3}], s{sbase+5} offen')
        a.e(f'buffer_load_dwordx4 v[{SH+4}:{SH+7}], v{T+1}, s[{mod_srd}:{mod_srd+3}], s{sbase+5} offen offset:16')
    else:
        a.e(f'buffer_load_dwordx4 v[{SH+4}:{SH+7}], v{T+1}, s[{mod_srd}:{mod_srd+3}], 0 offen offset:{shift_idx*2048+16}')
    a.e(f's_mov_b32 s{sbase+6}, {scale_idx*2048}')
    a.e(f'buffer_load_dwordx4 v[{SC}:{SC+3}], v{T+1}, s[{mod_srd}:{mod_srd+3}], s{sbase+6} offen')
    a.e(f'buffer_load_dwordx4 v[{SC+4}:{SC+7}], v{T+1}, s[{mod_srd}:{mod_srd+3}], s{sbase+6} offen offset:16')
    a.c('mean')
    a.e(f'v_add_f32 v{S}, v{X}, v{X+1}')
    for i in range(2, 8):
        a.e(f'v_add_f32 v{S}, v{S}, v{X+i}')
    wave_sum(a, S, T + 2, sbase)
    a.e(f'v_mul_f32 v{S}, 0x3b000000, v{S}')
    a.c('var (two-pass, fp32 mean)')
    a.e(f'v_mov_b32 v{T+1}, 0')
    for i in range(8):
        a.e(f'v_sub_f32 v{T+2}, v{X+i}, v{S}')
        a.e(f'v_fmac_f32 v{T+1}, v{T+2}, v{T+2}')
    wave_sum(a, T + 1, T + 2, sbase)
    a.e(f'v_mul_f32 v{T+1}, 0x3b000000, v{T+1}')
    rnd_pair(a, S, T + 1, T + 2)
    a.e(f'v_add_f32 v{T+1}, 0x3727c5ac, v{T+1}')
    rnd_pair(a, T + 1, T + 1, T + 2)
    a.e(f'v_sqrt_f32 v{T+1}, v{T+1}')
    a.e('s_nop 0')
    rnd_pair(a, T + 1, T + 1, T + 2)
    a.e(f'v_rcp_f32 v{T+3}, v{T+1}')
    a.e('s_nop 0')
    a.e('s_waitcnt vmcnt(0)')
    for i in range(0, 8, 2):
        x0, x1 = X + i, X + i + 1
        a.e(f'v_sub_f32 v{x0}, v{x0}, v{S}')
        a.e(f'v_sub_f32 v{x1}, v{x1}, v{S}')
        rnd_pair(a, x0, x1, T + 2)
        for x in (x0, x1):
            a.e(f'v_mul_f32 v{T+20}, v{x}, v{T+3}')
            a.e(f'v_fma_f32 v{T+21}, -v{T+20}, v{T+1}, v{x}')
            a.e(f'v_fma_f32 v{x}, v{T+21}, v{T+3}, v{T+20}')
        rnd_pair(a, x0, x1, T + 2)
        a.e(f'v_add_f32 v{SC+i}, 1.0, v{SC+i}')
        a.e(f'v_add_f32 v{SC+i+1}, 1.0, v{SC+i+1}')
        rnd_pair(a, SC + i, SC + i + 1, T + 2)
        a.e(f'v_mul_f32 v{x0}, v{x0}, v{SC+i}')
        a.e(f'v_mul_f32 v{x1}, v{x1}, v{SC+i+1}')
        rnd_pair(a, x0, x1, T + 2)
        a.e(f'v_add_f32 v{x0}, v{x0}, v{SH+i}')
        a.e(f'v_add_f32 v{x1}, v{x1}, v{SH+i+1}')
        a.e(f'v_cvt_pk_bf16_f32 v{X+8+i//2}, v{x0}, v{x1}')

def gen_ln1(a, name):
    kernel_begin(a, name)
    a.e('s_cmp_ge_u32 s2, 512')
    a.e(f's_cbranch_scc1 {name}_done')
    load_ptr(a, 4, 'x'); load_ptr(a, 8, 'ws')
    a.e('s_waitcnt lgkmcnt(0)')
    make_srd(a, 12, 4, 2048 * 512 * 2)
    make_srd(a, 16, 8, 3072 * 4, OFF_MOD)
    make_srd(a, 20, 8, 2048 * 512 * 2, OFF_H1)
    a.e('s_lshl_b32 s3, s2, 12')
    a.e('v_lshlrev_b32 v1, 4, v0')
    a.e('v_add_u32 v1, s3, v1')
    a.e('buffer_load_dwordx4 v[4:7], v1, s[12:15], 0 offen')
    a.e('s_waitcnt vmcnt(0)')
    X = 8
    for i in range(4):
        a.e(f'v_lshlrev_b32 v{X+2*i}, 16, v{4+i}')
        a.e(f'v_and_b32 v{X+2*i+1}, 0xffff0000, v{4+i}')
    ln_modulate(a, X, 24, 16, 0, 1, 24)
    a.e(f'buffer_store_dwordx4 v[{X+8}:{X+11}], v1, s[20:23], 0 offen')
    a.label(f'{name}_done')
    a.e('s_endpgm')
    kernel_desc(a, name, 64)

def gen_ln2(a, name):
    kernel_begin(a, name)
    a.e('s_cmp_ge_u32 s2, 512')
    a.e(f's_cbranch_scc1 {name}_done')
    load_ptr(a, 4, 'x'); load_ptr(a, 8, 'ws')
    a.e('s_waitcnt lgkmcnt(0)')
    make_srd(a, 12, 4, 2048 * 512 * 2)
    make_srd(a, 16, 8, 3072 * 4, OFF_MOD)
    make_srd(a, 20, 8, 2048 * 512 * 2, OFF_H2)
    make_srd(a, 32, 8, 2048 * 512 * 2, OFF_X1)
    make_srd(a, 36, 8, 4 * 2048 * 512 * 4, OFF_PART)
    a.e('s_lshl_b32 s3, s2, 12')
    a.e('v_lshlrev_b32 v1, 4, v0')
    a.e('v_add_u32 v1, s3, v1')
    a.e('v_lshlrev_b32 v2, 1, v1')
    a.e('buffer_load_dwordx4 v[4:7], v1, s[12:15], 0 offen')
    P = 64
    for sp in range(4):
        a.e(f's_mov_b32 s40, {sp*2048*512*4}')
        a.e(f'buffer_load_dwordx4 v[{P+8*sp}:{P+8*sp+3}], v2, s[36:39], s40 offen')
        a.e(f'buffer_load_dwordx4 v[{P+8*sp+4}:{P+8*sp+7}], v2, s[36:39], s40 offen offset:16')
    a.e('v_and_b32 v3, 63, v0')
    a.e('v_lshlrev_b32 v3, 5, v3')
    G = 96
    a.e(f's_mov_b32 s40, {2*2048}')
    a.e(f'buffer_load_dwordx4 v[{G}:{G+3}], v3, s[16:19], s40 offen')
    a.e(f'buffer_load_dwordx4 v[{G+4}:{G+7}], v3, s[16:19], s40 offen offset:16')
    a.e('s_waitcnt vmcnt(0)')
    X = 8
    for i in range(4):
        a.e(f'v_lshlrev_b32 v{X+2*i}, 16, v{4+i}')
        a.e(f'v_and_b32 v{X+2*i+1}, 0xffff0000, v{4+i}')
    for i in range(8):
        a.e(f'v_add_f32 v{P+i}, v{P+i}, v{P+8+i}')
        a.e(f'v_add_f32 v{P+16+i}, v{P+16+i}, v{P+24+i}')
        a.e(f'v_add_f32 v{P+i}, v{P+i}, v{P+16+i}')
    for i in range(0, 8, 2):
        rnd_pair(a, P + i, P + i + 1, 20)
        a.e(f'v_mul_f32 v{P+i}, v{P+i}, v{G+i}')
        a.e(f'v_mul_f32 v{P+i+1}, v{P+i+1}, v{G+i+1}')
        rnd_pair(a, P + i, P + i + 1, 20)
        a.e(f'v_add_f32 v{X+i}, v{X+i}, v{P+i}')
        a.e(f'v_add_f32 v{X+i+1}, v{X+i+1}, v{P+i+1}')
        a.e(f'v_cvt_pk_bf16_f32 v{4+i//2}, v{X+i}, v{X+i+1}')
        a.e(f'v_lshlrev_b32 v{X+i}, 16, v{4+i//2}')
        a.e(f'v_and_b32 v{X+i+1}, 0xffff0000, v{4+i//2}')
    a.e('buffer_store_dwordx4 v[4:7], v1, s[32:35], 0 offen')
    ln_modulate(a, X, 24, 16, 3, 4, 24)
    a.e(f'buffer_store_dwordx4 v[{X+8}:{X+11}], v1, s[20:23], 0 offen')
    a.label(f'{name}_done')
    a.e('s_endpgm')
    kernel_desc(a, name, 128)
```

```python
OFF_MOD   = 0x0
OFF_H1    = 0x10000
OFF_O     = 0x400000
OFF_PART  = 0x2000000
OFF_X1    = 0x3000000
OFF_H2    = 0x3400000
OFF_HM    = 0x3800000
def part_key(a, R):
    return a.sum(axis=0), R['att']
MAP = {
    'mod': (OFF_MOD, 'f32', (3072,), 'mod'),
    'h1': (OFF_H1, 'bf16', (2048, 512), 'h1'),
    'o': (OFF_O, 'bf16', (2048, 4096), 'o'),
    'part': (OFF_PART, 'f32', (4, 2048, 512), part_key),
    'x1': (OFF_X1, 'bf16', (2048, 512), 'x1'),
    'h2': (OFF_H2, 'bf16', (2048, 512), 'h2'),
    'hm': (OFF_HM, 'bf16', (2048, 1376), 'hm'),
}
```

```python
import sys
from asmlib import *
from wsmap import *
import k_small, k_gemm, k_attn

NAME = 'adaLN_cond__gqa_block_cached__glu_gated_geglu__prompt'
ref = open(f'cdna_kernels/{NAME}.s.ref').read()
header = [l for l in ref.splitlines() if l.startswith(';') and '@launch' not in l and 'Override' not in l and 'grid=ceil' not in l]

launches = []
a = Asm()
def add(kname, gen, grid, block, lds, **kw):
    launches.append(f'; @launch kernel={kname} grid=({grid},1,1) block=({block},1,1) lds={lds}')
    gen(a, kname, **kw)

add('mod_kernel', k_small.gen_mod, 48, 256, 4096)
add('ln1_kernel', k_small.gen_ln1, 512, 256, 0)
def addg(kname, gen, grid):
    i = len(launches)
    launches.append(None)
    lds = gen(a, kname)
    launches[i] = f'; @launch kernel={kname} grid=({grid},1,1) block=(256,1,1) lds={lds}'
addg('attn_kernel', k_attn.gen_attn, 256)
addg('oproj_kernel', k_gemm.gen_oproj, 256)
add('ln2_kernel', k_small.gen_ln2, 512, 256, 0)
addg('gateup_kernel', k_gemm.gen_gateup, 352)
addg('down_kernel', k_gemm.gen_down, 256)

out = '\n'.join(header) + '\n' + '\n'.join(launches) + '\n'
out += '.amdgcn_target "amdgcn-amd-amdhsa--gfx950"\n.text\n' + a.text()
dst = sys.argv[1] if len(sys.argv) > 1 else f'cdna_kernels/{NAME}.s'
open(dst, 'w').write(out)
print('wrote', dst, len(out))
```
